```python
import torch

def _softmax(x, axis=-1):
    return torch.softmax(x, dim=axis)
def _gelu(x):
    return torch.nn.functional.gelu(x, approximate="tanh")
def _silu(x):
    return torch.nn.functional.silu(x)
def _sigmoid(x):
    return torch.sigmoid(x)
def _layernorm(x, axis=-1, eps=1e-5):
    m = x.mean(dim=axis, keepdim=True)
    v = x.var(dim=axis, keepdim=True, unbiased=False)
    return (x - m) / torch.sqrt(v + eps)
def _scatter_add(tgt, idx, src, axis=0):
    return tgt.clone().index_add_(axis, idx, src)
def _segment_sum(src, seg, n):
    out = torch.zeros((n,) + src.shape[1:], dtype=src.dtype)
    return out.index_add_(0, seg, src)
def _pad(x, pw):
    flat = tuple(v for pair in reversed(pw) for v in pair)
    return torch.nn.functional.pad(x, flat)

kernel_name = 'gated_mix__ssm_conv_h3__glu_gated_geglu__prompt'

def setup_inputs():

    _w = (lambda a: (lambda t: t.to(torch.bfloat16) if t.is_floating_point() else t)(torch.as_tensor(a)))
    def _A_setup():
        B, S, D = 1, 2048, 512
        ks = 4
        return {
            "q": _w((lambda *s: torch.randn(*s, dtype=torch.bfloat16) * 0.05)(B, S, D)),
            "k": _w((lambda *s: torch.randn(*s, dtype=torch.bfloat16) * 0.05)(B, S, D)),
            "v": _w((lambda *s: torch.randn(*s, dtype=torch.bfloat16) * 0.05)(B, S, D)),
            "shift_k": _w((lambda *s: torch.randn(*s, dtype=torch.bfloat16) * 0.05)(D, ks) * 0.5),
            "ssm_k": _w((lambda *s: torch.randn(*s, dtype=torch.bfloat16) * 0.05)(D, S) * (1.0 / S ** 0.5)),
            "ssm_D": _w((lambda *s: torch.randn(*s, dtype=torch.bfloat16) * 0.05)(D)),
        }
    _A_in = _A_setup()

    def _B_setup():
        B, S, Dm, Df = 1, 2048, 512, 1792
        return {
            "x": _w((lambda *s: torch.randn(*s, dtype=torch.bfloat16) * 0.05)(B, S, Dm)),
            "w_gate": _w((lambda *s: torch.randn(*s, dtype=torch.bfloat16) * 0.1)(Dm, Df) * (Dm ** -0.5)),
            "w_up": _w((lambda *s: torch.randn(*s, dtype=torch.bfloat16) * 0.1)(Dm, Df) * (Dm ** -0.5)),
            "w_down": _w((lambda *s: torch.randn(*s, dtype=torch.bfloat16) * 0.1)(Df, Dm) * (Df ** -0.5)),
        }
    _B_in = _B_setup()

    return {
        "A_q": _A_in["q"],
        "A_k": _A_in["k"],
        "A_v": _A_in["v"],
        "A_shift_k": _A_in["shift_k"],
        "A_ssm_k": _A_in["ssm_k"],
        "A_ssm_D": _A_in["ssm_D"],
        "B_x": _B_in["x"],
        "B_w_gate": _B_in["w_gate"],
        "B_w_up": _B_in["w_up"],
        "B_w_down": _B_in["w_down"],
        "gate_w": _w((lambda *s: torch.randn(*s, dtype=torch.bfloat16) * 0.05)(512) * 16.0),
    }

def reference(A_q, A_k, A_v, A_shift_k, A_ssm_k, A_ssm_D, B_x, B_w_gate, B_w_up, B_w_down, gate_w):
    def _A_ref(q, k, v, shift_k, ssm_k, ssm_D):
        B, S, D = q.shape
        ks = shift_k.shape[-1]
        k_pad = _pad(k, ((0, 0), (ks - 1, 0), (0, 0)))
        k_shift = torch.zeros_like(k)
        for t in range(ks):
            k_shift = k_shift + k_pad[:, t:t + S, :] * shift_k[:, ks - 1 - t][None, None, :]
        kv = k_shift * v
        L = 2 * S
        kv_pad = _pad(kv, ((0, 0), (0, S), (0, 0)))
        kf_pad = _pad(ssm_k, ((0, 0), (0, S)))
        kv_f = (lambda x, axes=(-2,-1): torch.fft.rfft2(x.float(), dim=axes))(kv_pad[:, None, :, :], axes=(1, 2))
        kf_f = (lambda x, axes=(-2,-1): torch.fft.rfft2(x.float(), dim=axes))(kf_pad[:, None, :], axes=(1, 2))
        kf_f = (lambda x, *d: x.permute(*d))(kf_f, 1, 2, 0)
        y_f = kv_f * kf_f[None, :, :, :]
        y = (lambda x, s, axes=(-2,-1): torch.fft.irfft2(x, s=s, dim=axes).to(torch.bfloat16))(y_f, (1, L), axes=(1, 2))[:, 0, :S, :]
        y = y + kv * ssm_D[None, None, :]
        return q * y

    def _B_ref(x, w_gate, w_up, w_down):
        g = torch.einsum("bsd,df->bsf", x, w_gate)
        u = torch.einsum("bsd,df->bsf", x, w_up)
        h = _gelu(g) * u
        return torch.einsum("bsf,fd->bsd", h, w_down)

    x = A_q
    g = _sigmoid((x * gate_w).sum(-1, keepdims=True))
    a = _A_ref(x, A_k, A_v, A_shift_k, A_ssm_k, A_ssm_D)
    b = _B_ref(x, B_w_gate, B_w_up, B_w_down)
    return g * a + (1 - g) * b
```

```python
class Asm:
    def __init__(self):
        self.L = []
        self.nlabel = 0
    def __call__(self, s):
        for line in s.split("\n"):
            line = line.strip()
            if line:
                self.L.append("    " + line if not line.endswith(":") else line)
    def c(self, s):
        self.L.append("    ; " + s)
    def label(self, base="L"):
        self.nlabel += 1
        return f"{base}_{self.nlabel}"
    def text(self):
        return "\n".join(self.L) + "\n"

def vr(a, n=1):
    return f"v{a}" if n == 1 else f"v[{a}:{a+n-1}]"
def sr(a, n=1):
    return f"s{a}" if n == 1 else f"s[{a}:{a+n-1}]"

class Regs:
    def __init__(self, start, limit):
        self.p = start; self.limit = limit; self.hi = start
    def alloc(self, n=1, align=1):
        self.p = (self.p + align - 1) // align * align
        r = self.p
        self.p += n
        assert self.p <= self.limit, f"out of regs {self.p} > {self.limit}"
        self.hi = max(self.hi, self.p)
        return r
    def mark(self): return self.p
    def release(self, m): self.p = m
```

```python
from asmlib import *
NAME = "gated_mix__ssm_conv_h3__glu_gated_geglu__prompt"
WS_XR = 0x000000
WS_GATE = 0x200000
WS_HF = 0x300000
WS_YT = 0xA00000
WS_FLAG = 0xC00000
S_Q, S_K, S_V, S_SHK, S_SSMK, S_SSMD, S_X, S_WG, S_WU, S_WD, S_GW, S_OUT, S_DBG, S_WS = [4 + 2 * i for i in range(14)]
S_WAVE = 33
S_T0 = 34
SRD_A, SRD_B, SRD_C, SRD_D, SRD_E = 48, 52, 56, 60, 64
S_U = 68

def prologue(a):
    a("s_load_dwordx16 s[4:19], s[0:1], 0")
    a("s_load_dwordx8 s[20:27], s[0:1], 64")
    a("s_load_dwordx4 s[28:31], s[0:1], 96")
    a("s_cmp_ge_u32 s2, 256")
    a("s_cbranch_scc1 L_end")
    a("v_lshrrev_b32 v1, 6, v0")
    a("v_and_b32 v0, 63, v0")
    a(f"v_readfirstlane_b32 s{S_WAVE}, v1")
    a("s_waitcnt lgkmcnt(0)")

def srd(a, dst, ptr, nbytes, off=0, offreg=None):
    if offreg is not None:
        a(f"s_add_u32 s{dst}, s{ptr}, s{offreg}")
        a(f"s_addc_u32 s{dst+1}, s{ptr+1}, 0")
        if off:
            a(f"s_add_u32 s{dst}, s{dst}, {off}")
            a(f"s_addc_u32 s{dst+1}, s{dst+1}, 0")
    elif off:
        a(f"s_add_u32 s{dst}, s{ptr}, {off}")
        a(f"s_addc_u32 s{dst+1}, s{ptr+1}, 0")
    else:
        a(f"s_mov_b32 s{dst}, s{ptr}")
        a(f"s_mov_b32 s{dst+1}, s{ptr+1}")
    a(f"s_mov_b32 s{dst+2}, {nbytes}")
    a(f"s_mov_b32 s{dst+3}, 0x20000")

def kdesc(name, vgpr=256, sgpr=102):
    return f""".section .rodata,"a"
.p2align 6
.amdhsa_kernel {name}
  .amdhsa_next_free_vgpr {vgpr}
  .amdhsa_next_free_sgpr {sgpr}
  .amdhsa_accum_offset {vgpr}
  .amdhsa_group_segment_fixed_size 0
  .amdhsa_kernarg_size 112
  .amdhsa_user_sgpr_count 2
  .amdhsa_user_sgpr_kernarg_segment_ptr 1
  .amdhsa_system_sgpr_workgroup_id_x 1
.end_amdhsa_kernel
.text
"""
def khead(name):
    return f""".text
.globl {name}
.p2align 8
.type {name},@function
{name}:
"""
LOG2E = 1.4426950408889634
import struct
def f2u(x): return struct.unpack("<I", struct.pack("<f", x))[0]

STAMPS = False
S_STAMP = 88
WS_STAMP = 0xE00000
def stamp(a, idx):
    if STAMPS:
        a(f"s_memtime s[{S_STAMP+2*idx}:{S_STAMP+2*idx+1}]")
def stamp_rt(a, idx):
    if STAMPS:
        a(f"s_memrealtime s[{S_STAMP+2*idx}:{S_STAMP+2*idx+1}]")
def stamp_flush(a, kidx=0):
    if not STAMPS: return
    a("s_waitcnt lgkmcnt(0) vmcnt(0)")
    srd(a, SRD_A, S_WS, 0x100000, off=WS_STAMP + kidx * 0x20000)
    a(f"s_lshl_b32 s{S_T0}, s2, 3")
    a(f"s_add_u32 s{S_T0}, s{S_T0}, s{S_WAVE}")
    a(f"s_lshl_b32 s{S_T0}, s{S_T0}, 5")
    for i in range(7):
        a(f"v_mov_b32 v{2+i}, s{S_STAMP+2*i}")
    a("v_mov_b32 v9, 0")
    a("v_mov_b32 v1, 0")
    a("v_cmp_eq_u32 vcc, 0, v0")
    a(f"s_and_saveexec_b64 s[{S_T0+2}:{S_T0+3}], vcc")
    a(f"buffer_store_dwordx4 v[2:5], v1, s[{SRD_A}:{SRD_A+3}], s{S_T0} offen")
    a(f"buffer_store_dwordx4 v[6:9], v1, s[{SRD_A}:{SRD_A+3}], s{S_T0} offen offset:16")
    a(f"s_mov_b64 exec, s[{S_T0+2}:{S_T0+3}]")
```

```python
from common import *
def p0_issue(a, R, st_flags=""):
    r = {}
    a.c("P0: issue loads")
    srd(a, SRD_A, S_K, 2048*1024)
    srd(a, SRD_B, S_V, 2048*1024)
    srd(a, SRD_C, S_SHK, 512*8)
    srd(a, SRD_D, S_Q, 2048*1024)
    srd(a, SRD_E, S_GW, 1024)
    T = S_T0
    a(f"s_and_b32 s{T}, s2, 7")
    a(f"s_lshr_b32 s{T+1}, s2, 3")
    a(f"s_lshl_b32 s{T}, s{T}, 7")
    a(f"s_lshl_b32 s{T+2}, s{S_WAVE}, 5")
    a(f"s_add_u32 s{T}, s{T}, s{T+2}")
    voff = R.alloc(); vt = R.alloc(); vt2 = R.alloc()
    a(f"v_and_b32 v{vt}, 1, v0")
    a(f"v_lshlrev_b32 v{vt}, 4, v{vt}")
    a(f"v_add_u32 v{vt}, s{T}, v{vt}")
    a(f"v_lshrrev_b32 v{vt2}, 1, v0")
    a(f"v_lshlrev_b32 v{voff}, 11, v{vt2}")
    a(f"s_lshl_b32 s{T+1}, s{T+1}, 16")
    a(f"v_add_u32 v{voff}, s{T+1}, v{voff}")
    a(f"v_add_u32 v{voff}, v{voff}, v{vt}")
    kr = [R.alloc(4, 4) for _ in range(5)]
    vv = [R.alloc(4, 4) for _ in range(2)]
    wr = [R.alloc(4, 4) for _ in range(4)]
    qr = [R.alloc(4, 4) for _ in range(2)]
    gw = R.alloc(4, 4)
    ko = [R.alloc() for _ in range(5)]
    for i in range(5):
        a(f"v_add_u32 v{ko[i]}, {(i-3)*1024 & 0xffffffff}, v{voff}")
    for i in range(5):
        a(f"buffer_load_dwordx4 {vr(kr[i],4)}, v{ko[i]}, s[{SRD_A}:{SRD_A+3}], 0 offen")
    a(f"buffer_load_dwordx4 {vr(vv[0],4)}, v{voff}, s[{SRD_B}:{SRD_B+3}], 0 offen")
    a(f"buffer_load_dwordx4 {vr(vv[1],4)}, v{voff}, s[{SRD_B}:{SRD_B+3}], 0 offen offset:1024")
    a(f"v_lshlrev_b32 v{vt}, 2, v{vt}")
    for i in range(4):
        a(f"buffer_load_dwordx4 {vr(wr[i],4)}, v{vt}, s[{SRD_C}:{SRD_C+3}], 0 offen offset:{16*i}")
    a(f"s_lshl_b32 s{T}, s2, 3")
    a(f"s_lshl_b32 s{T+2}, s{S_WAVE}, 1")
    a(f"s_add_u32 s{T+3}, s{T}, s{T+2}")
    a(f"s_lshl_b32 s{T}, s{T+3}, 10")
    a(f"v_lshlrev_b32 v{vt2}, 4, v0")
    a(f"buffer_load_dwordx4 {vr(qr[0],4)}, v{vt2}, s[{SRD_D}:{SRD_D+3}], s{T} offen")
    a(f"buffer_load_dwordx4 {vr(qr[1],4)}, v{vt2}, s[{SRD_D}:{SRD_D+3}], s{T} offen offset:1024")
    a(f"buffer_load_dwordx4 {vr(gw,4)}, v{vt2}, s[{SRD_E}:{SRD_E+3}], 0 offen")
    r.update(kr=kr, vv=vv, wr=wr, qr=qr, gw=gw)
    return r

def unpack(a, dlo, dhi, src):
    a(f"v_lshlrev_b32 v{dlo}, 16, v{src}")
    a(f"v_and_b32 v{dhi}, 0xffff0000, v{src}")

def p0_compute(a, R, r, lds_off, st_flags=""):
    T = S_T0
    kr, vv, wr, qr, gw = r["kr"], r["vv"], r["wr"], r["qr"], r["gw"]
    a.c("P0: compute")
    a("s_waitcnt vmcnt(0)")
    m = R.mark()
    kf = [[R.alloc() for _ in range(2)] for _ in range(5)]
    vf = [[R.alloc() for _ in range(2)] for _ in range(2)]
    wf = [[R.alloc() for _ in range(4)] for _ in range(2)]
    acc = [[R.alloc() for _ in range(2)] for _ in range(2)]
    pk = [R.alloc() for _ in range(8)]
    vl = R.alloc(); vt = R.alloc()
    a(f"s_lshl_b32 s{T}, s{S_WAVE}, 11")
    a(f"s_add_u32 s{T}, s{T}, {lds_off}")
    a(f"v_and_b32 v{vl}, 1, v0")
    a(f"v_lshlrev_b32 v{vl}, 10, v{vl}")
    a(f"v_lshrrev_b32 v{vt}, 1, v0")
    a(f"v_sub_u32 v{vt}, 31, v{vt}")
    a(f"v_lshlrev_b32 v{vt}, 2, v{vt}")
    a(f"v_add3_u32 v{vl}, v{vl}, v{vt}, s{T}")
    for u in range(4):
        for i in range(5):
            unpack(a, kf[i][0], kf[i][1], kr[i] + u)
        for i in range(2):
            unpack(a, vf[i][0], vf[i][1], vv[i] + u)
        for cch in range(2):
            unpack(a, wf[cch][0], wf[cch][1], wr[u] + 2 * cch)
            unpack(a, wf[cch][2], wf[cch][3], wr[u] + 2 * cch + 1)
        for row in range(2):
            for cch in range(2):
                a(f"v_mul_f32 v{acc[row][cch]}, v{kf[row][cch]}, v{wf[cch][3]}")
                for j in (2, 1, 0):
                    a(f"v_fmac_f32 v{acc[row][cch]}, v{kf[row+3-j][cch]}, v{wf[cch][j]}")
                a(f"v_mul_f32 v{acc[row][cch]}, v{acc[row][cch]}, v{vf[row][cch]}")
        for cch in range(2):
            a(f"v_cvt_pk_bf16_f32 v{pk[2*u+cch]}, v{acc[1][cch]}, v{acc[0][cch]}")
    for i in range(8):
        a(f"ds_write_b32 v{vl}, v{pk[i]} offset:{128*i}")
    rb = [R.alloc(4, 4) for _ in range(2)]
    a(f"v_lshlrev_b32 v{vt}, 4, v0")
    a(f"v_add_u32 v{vl}, s{T}, v{vt}")
    a("s_waitcnt lgkmcnt(0)")
    a(f"ds_read_b128 {vr(rb[0],4)}, v{vl}")
    a(f"ds_read_b128 {vr(rb[1],4)}, v{vl} offset:1024")
    srd(a, SRD_A, S_WS, 512*4096, off=WS_XR)
    a(f"s_and_b32 s{T}, s2, 7")
    a(f"s_lshl_b32 s{T}, s{T}, 2")
    a(f"s_add_u32 s{T}, s{T}, s{S_WAVE}")
    a(f"s_lshl_b32 s{T}, s{T}, 16")
    a(f"s_lshr_b32 s{T+1}, s2, 3")
    a(f"s_lshl_b32 s{T+1}, s{T+1}, 7")
    a(f"s_sub_u32 s{T+1}, 3968, s{T+1}")
    a(f"s_add_u32 s{T}, s{T}, s{T+1}")
    a(f"v_lshrrev_b32 v{vt}, 3, v0")
    a(f"v_lshlrev_b32 v{vt}, 12, v{vt}")
    a(f"v_and_b32 v{vl}, 7, v0")
    a(f"v_lshlrev_b32 v{vl}, 4, v{vl}")
    a(f"v_add_u32 v{vt}, v{vt}, v{vl}")
    a(f"s_add_u32 s{T+1}, s{T}, {8*4096}")
    a("s_waitcnt lgkmcnt(0)")
    a(f"buffer_store_dwordx4 {vr(rb[0],4)}, v{vt}, s[{SRD_A}:{SRD_A+3}], s{T} offen {st_flags}")
    a(f"buffer_store_dwordx4 {vr(rb[1],4)}, v{vt}, s[{SRD_A}:{SRD_A+3}], s{T+1} offen {st_flags}")
    a.c("P0: gate")
    z = [R.alloc() for _ in range(2)]
    t0, t1, t2, t3 = [R.alloc() for _ in range(4)]
    for row in range(2):
        for u in range(4):
            unpack(a, t0, t1, qr[row] + u)
            unpack(a, t2, t3, gw + u)
            a(f"v_mul_f32 v{t0}, v{t0}, v{t2}")
            a(f"v_mul_f32 v{t1}, v{t1}, v{t3}")
            a(f"v_cvt_pk_bf16_f32 v{t0}, v{t0}, v{t1}")
            unpack(a, t2, t3, t0)
            if u == 0:
                a(f"v_add_f32 v{z[row]}, v{t2}, v{t3}")
            else:
                a(f"v_add_f32 v{z[row]}, v{z[row]}, v{t2}")
                a(f"v_add_f32 v{z[row]}, v{z[row]}, v{t3}")
    for d in ["row_shr:1", "row_shr:2", "row_shr:4", "row_shr:8"]:
        a("s_nop 1")
        for row in range(2):
            a(f"v_add_f32_dpp v{z[row]}, v{z[row]}, v{z[row]} {d} row_mask:0xf bank_mask:0xf bound_ctrl:0")
    for d, msk in [("row_bcast:15", "0xa"), ("row_bcast:31", "0xc")]:
        a("s_nop 1")
        for row in range(2):
            a(f"v_add_f32_dpp v{z[row]}, v{z[row]}, v{z[row]} {d} row_mask:{msk} bank_mask:0xf")
    a("s_nop 1")
    a(f"v_cvt_pk_bf16_f32 v{t0}, v{z[0]}, v{z[1]}")
    unpack(a, z[0], z[1], t0)
    a(f"s_mov_b32 s{T}, {f2u(-LOG2E):#x}")
    for row in range(2):
        a(f"v_mul_f32 v{z[row]}, s{T}, v{z[row]}")
    for row in range(2):
        a(f"v_exp_f32 v{z[row]}, v{z[row]}")
    a("s_nop 0")
    for row in range(2):
        a(f"v_add_f32 v{z[row]}, 1.0, v{z[row]}")
    for row in range(2):
        a(f"v_rcp_f32 v{z[row]}, v{z[row]}")
    a("s_nop 0")
    a(f"v_cvt_pk_bf16_f32 v{t0}, v{z[0]}, v{z[1]}")
    g2 = R.alloc(2, 2)
    unpack(a, g2, g2 + 1, t0)
    srd(a, SRD_B, S_WS, 8192, off=WS_GATE)
    a(f"s_lshl_b32 s{T}, s2, 3")
    a(f"s_lshl_b32 s{T+2}, s{S_WAVE}, 1")
    a(f"s_add_u32 s{T}, s{T}, s{T+2}")
    a(f"s_lshl_b32 s{T}, s{T}, 2")
    a(f"v_mov_b32 v{vt}, 0")
    a(f"v_cmp_eq_u32 vcc, 63, v0")
    a(f"s_and_saveexec_b64 s[{T+2}:{T+3}], vcc")
    a(f"buffer_store_dwordx2 {vr(g2,2)}, v{vt}, s[{SRD_B}:{SRD_B+3}], s{T} offen {st_flags}")
    a(f"s_mov_b64 exec, s[{T+2}:{T+3}]")
    R.release(m)
```

```python
from common import *
P1_X = 0
P1_G = 16384
P1_U = 16384 + 14336 + 128
P1_STAGE = 45312
P1_LDS = 3 * P1_STAGE
assert all((ci * 4682) >> 16 == ci // 14 for ci in range(896))

def p1_map(a, s_mb, s_fb):
    T = S_T0
    a(f"s_and_b32 s{T}, s2, 7")
    a(f"s_lshr_b32 s{T+1}, s2, 3")
    a(f"s_and_b32 s{s_mb}, s{T}, 1")
    a(f"s_lshl_b32 s{s_mb}, s{s_mb}, 3")
    a(f"s_and_b32 s{T+2}, s{T+1}, 7")
    a(f"s_add_u32 s{s_mb}, s{s_mb}, s{T+2}")
    a(f"s_lshr_b32 s{s_fb}, s{T}, 1")
    a(f"s_lshl_b32 s{s_fb}, s{s_fb}, 2")
    a(f"s_lshr_b32 s{T+2}, s{T+1}, 3")
    a(f"s_add_u32 s{s_fb}, s{s_fb}, s{T+2}")

def p1_loader_setup(a, R):
    T = S_T0
    s_mb, s_fb, s_lv, s_sx, s_sw, s_m0x, s_m0w, s_cnt, s_sb = [S_U + i for i in range(9)]
    p1_map(a, s_mb, s_fb)
    a(f"s_sub_u32 s{s_lv}, s{S_WAVE}, 4")
    srd(a, SRD_A, S_Q, 2048 * 1024)
    a(f"s_cmp_lt_u32 s{s_lv}, 2")
    a(f"s_cselect_b32 s{SRD_B}, s{S_WG}, s{S_WU}")
    a(f"s_cselect_b32 s{SRD_B+1}, s{S_WG+1}, s{S_WU+1}")
    a(f"s_mov_b32 s{SRD_B+2}, {512*3584}")
    a(f"s_mov_b32 s{SRD_B+3}, 0x20000")
    vx = [R.alloc() for _ in range(4)]
    vw = [R.alloc() for _ in range(7)]
    t0, t1, t2 = R.alloc(), R.alloc(), R.alloc()
    a(f"s_lshl_b32 s{T}, s{s_mb}, 7")
    a(f"s_lshl_b32 s{T+1}, s{s_lv}, 5")
    a(f"s_add_u32 s{T}, s{T}, s{T+1}")
    a(f"s_lshl_b32 s{T}, s{T}, 10")
    a(f"v_lshrrev_b32 v{t0}, 3, v0")
    a(f"v_lshlrev_b32 v{t0}, 10, v{t0}")
    a(f"v_add_u32 v{t0}, s{T}, v{t0}")
    a(f"v_and_b32 v{t1}, 7, v0")
    a(f"v_lshrrev_b32 v{t2}, 4, v0")
    for n in range(4):
        if n & 1:
            a(f"v_or_b32 v{vx[n]}, 4, v{t2}")
            a(f"v_xor_b32 v{vx[n]}, v{vx[n]}, v{t1}")
        else:
            a(f"v_xor_b32 v{vx[n]}, v{t2}, v{t1}")
        a(f"v_lshlrev_b32 v{vx[n]}, 4, v{vx[n]}")
        a(f"v_add_u32 v{vx[n]}, v{vx[n]}, v{t0}")
        if n:
            a(f"v_add_u32 v{vx[n]}, {n*8192 - n*1024}, v{vx[n]}")
    a(f"s_and_b32 s{T}, s{s_lv}, 1")
    a(f"s_mul_i32 s{T}, s{T}, 448")
    a(f"s_mul_i32 s{T+1}, s{s_fb}, 224")
    a(f"s_movk_i32 s{T+2}, 4682")
    a(f"s_movk_i32 s{T+3}, 3584")
    for n in range(7):
        a(f"v_add_u32 v{t0}, s{T}, v0")
        if n:
            a(f"v_add_u32 v{t0}, {64*n}, v{t0}")
        a(f"v_mul_lo_u32 v{t1}, v{t0}, s{T+2}")
        a(f"v_lshrrev_b32 v{t1}, 16, v{t1}")
        a(f"v_mul_u32_u24 v{t2}, 14, v{t1}")
        a(f"v_sub_u32 v{t2}, v{t0}, v{t2}")
        a(f"v_lshlrev_b32 v{t2}, 4, v{t2}")
        a(f"v_mul_lo_u32 v{t1}, v{t1}, s{T+3}")
        a(f"v_add3_u32 v{vw[n]}, v{t1}, v{t2}, s{T+1}")
        if n & 3:
            a(f"v_sub_u32 v{vw[n]}, v{vw[n]}, {1024*(n&3)}" if False else f"v_subrev_u32 v{vw[n]}, {1024*(n&3)}, v{vw[n]}")
    a(f"s_lshl_b32 s{s_m0x}, s{s_lv}, 12")
    a(f"s_lshr_b32 s{T}, s{s_lv}, 1")
    a(f"s_mul_i32 s{T}, s{T}, {P1_U - P1_G}")
    a(f"s_and_b32 s{T+1}, s{s_lv}, 1")
    a(f"s_mul_i32 s{T+1}, s{T+1}, 7168")
    a(f"s_add_u32 s{s_m0w}, s{T}, s{T+1}")
    a(f"s_add_u32 s{s_m0w}, s{s_m0w}, {P1_G}")
    a(f"s_mov_b32 s{s_sx}, 0")
    a(f"s_mov_b32 s{s_sw}, 0")
    a(f"s_mov_b32 s{s_sb}, 0")
    return dict(vx=vx, vw=vw, s_sx=s_sx, s_sw=s_sw, s_m0x=s_m0x, s_m0w=s_m0w, s_cnt=s_cnt, s_sb=s_sb)

def p1_issue_stage(a, st):
    vx, vw = st["vx"], st["vw"]
    a(f"s_add_u32 m0, s{st['s_sb']}, s{st['s_m0x']}")
    a("s_nop 0")
    for n in range(4):
        a(f"buffer_load_dwordx4 v{vx[n]}, s[{SRD_A}:{SRD_A+3}], s{st['s_sx']} offen offset:{1024*n} lds")
    a(f"s_add_u32 m0, s{st['s_sb']}, s{st['s_m0w']}")
    a("s_nop 0")
    for n in range(4):
        a(f"buffer_load_dwordx4 v{vw[n]}, s[{SRD_B}:{SRD_B+3}], s{st['s_sw']} offen offset:{1024*n} lds")
    a("s_add_u32 m0, m0, 4096")
    a("s_nop 0")
    for n in range(4, 7):
        a(f"buffer_load_dwordx4 v{vw[n]}, s[{SRD_B}:{SRD_B+3}], s{st['s_sw']} offen offset:{1024*(n-4)} lds")
    a(f"s_add_u32 s{st['s_sx']}, s{st['s_sx']}, 128")
    a(f"s_add_u32 s{st['s_sw']}, s{st['s_sw']}, {64*3584}")
    a(f"s_add_u32 s{st['s_sb']}, s{st['s_sb']}, {P1_STAGE}")
    a(f"s_cmp_eq_u32 s{st['s_sb']}, {3*P1_STAGE}")
    a(f"s_cselect_b32 s{st['s_sb']}, 0, s{st['s_sb']}")

def p1_loader_run(a, st):
    for _ in range(3):
        p1_issue_stage(a, st)
    a("s_waitcnt vmcnt(22)")
    a("s_barrier")
    a(f"s_mov_b32 s{st['s_cnt']}, 0")
    lp = a.label("P1L")
    a(f"{lp}:")
    a("s_waitcnt vmcnt(11)")
    a("s_barrier")
    a(f"s_cmp_ge_u32 s{st['s_cnt']}, 5")
    a(f"s_cselect_b32 s{SRD_A+2}, 0, s{SRD_A+2}")
    a(f"s_cselect_b32 s{SRD_B+2}, 0, s{SRD_B+2}")
    p1_issue_stage(a, st)
    a(f"s_add_u32 s{st['s_cnt']}, s{st['s_cnt']}, 1")
    a(f"s_cmp_lt_u32 s{st['s_cnt']}, 8")
    a(f"s_cbranch_scc1 {lp}")

def p1_compute(a, R, st_flags=""):
    T = S_T0
    s_mb, s_fb, s_cnt, s_sb, s_dl, s_x0, s_x1 = [S_U + i for i in range(7)]
    p1_map(a, s_mb, s_fb)
    acc = [R.alloc(16, 4) for _ in range(7)]
    WF = [[R.alloc(4, 4) for _ in range(4)] for _ in range(2)]
    XF = [[R.alloc(4, 4) for _ in range(2)] for _ in range(2)]
    xa = [[R.alloc() for _ in range(4)] for _ in range(2)]
    wa, wd = R.alloc(), R.alloc()
    t0, t1, t2 = R.alloc(), R.alloc(), R.alloc()
    a(f"s_and_b32 s{s_x0}, s{S_WAVE}, 1")
    a(f"s_lshl_b32 s{s_x0}, s{s_x0}, 1")
    a(f"s_lshr_b32 s{T}, s{S_WAVE}, 1")
    a(f"s_or_b32 s{s_x0}, s{s_x0}, s{T}")
    a(f"s_xor_b32 s{s_x1}, s{s_x0}, 1")
    a(f"v_and_b32 v{t0}, 31, v0")
    a(f"v_lshrrev_b32 v{t1}, 5, v0")
    a(f"v_bfe_u32 v{t2}, v0, 1, 3")
    a(f"v_xor_b32 v{t1}, v{t1}, v{t2}")
    a(f"v_lshlrev_b32 v{t1}, 4, v{t1}")
    a(f"v_lshl_add_u32 v{t0}, v{t0}, 7, v{t1}")
    for xi, sx in enumerate((s_x0, s_x1)):
        a(f"s_lshl_b32 s{T}, s{sx}, 12")
        for k in range(4):
            a(f"v_xor_b32 v{xa[xi][k]}, {32*k}, v{t0}")
            a(f"v_add_u32 v{xa[xi][k]}, s{T}, v{xa[xi][k]}")
    a(f"v_lshrrev_b32 v{t0}, 5, v0")
    a(f"v_lshlrev_b32 v{t0}, 3, v{t0}")
    a(f"v_bfe_u32 v{t1}, v0, 2, 2")
    a(f"v_add_u32 v{t0}, v{t0}, v{t1}")
    a(f"v_mul_u32_u24 v{t0}, 224, v{t0}")
    a(f"v_bfe_u32 v{t1}, v0, 4, 1")
    a(f"v_lshl_add_u32 v{t0}, v{t1}, 4, v{t0}")
    a(f"v_and_b32 v{t1}, 1, v0")
    a(f"v_lshl_add_u32 v{t0}, v{t1}, 3, v{t0}")
    a(f"v_bfe_u32 v{t1}, v0, 1, 1")
    a(f"v_mul_u32_u24 v{t1}, {P1_U-P1_G}, v{t1}")
    a(f"v_add_u32 v{t0}, v{t0}, v{t1}")
    a(f"v_add_u32 v{wd}, {P1_G + 3*32}, v{t0}")
    a(f"s_lshr_b32 s{T}, s{S_WAVE}, 1")
    a(f"s_lshl_b32 s{T}, s{T}, 7")
    a(f"s_add_u32 s{T}, s{T}, {P1_G}")
    a(f"v_add_u32 v{wa}, s{T}, v{t0}")
    for t in range(7):
        for i in range(16):
            a(f"v_mov_b32 v{acc[t]+i}, 0")
    def reads(fs, k):
        L = []
        for xi in range(2):
            L.append(f"ds_read_b128 {vr(XF[fs][xi],4)}, v{xa[xi][k]}")
        for i in range(4):
            for rho in range(2):
                off = k * 16 * 224 + rho * 4 * 224 + (32 * i if i < 3 else 0)
                L.append(f"ds_read_b64_tr_b16 {vr(WF[fs][i] + 2*rho, 2)}, v{wa if i < 3 else wd} offset:{off}")
        return [L[0], L[2], L[3], L[1], L[4], L[5], L[6], L[7], L[8], L[9]]
    def mfmas(fs):
        order = [(0,0,0),(1,0,1),(2,1,0),(3,1,1),(4,2,0),(5,2,1),(6,3,0)]
        return [f"v_mfma_f32_32x32x16_bf16 {vr(acc[t],16)}, {vr(WF[fs][w],4)}, {vr(XF[fs][x],4)}, {vr(acc[t],16)}" for t, w, x in order]
    a("s_barrier")
    stamp(a,2)
    for ins in reads(0, 0): a(ins)
    a(f"s_mov_b32 s{s_cnt}, 0")
    a(f"s_mov_b32 s{s_sb}, 0")
    lp = a.label("P1C")
    a(f"{lp}:")
    for k in range(4):
        fs = k & 1
        M = mfmas(fs)
        a("s_waitcnt lgkmcnt(0)")
        if k < 3:
            Rd = reads(fs ^ 1, k + 1)
            for i, m in enumerate(M):
                a(m)
                for ins in Rd[2*i:2*i+2]: a(ins)
        else:
            a(M[0])
            a("s_barrier")
            a(f"s_add_u32 s{s_dl}, s{s_sb}, {P1_STAGE}")
            a(f"s_cmp_eq_u32 s{s_dl}, {3*P1_STAGE}")
            a(f"s_cselect_b32 s{s_dl}, 0, s{s_dl}")
            a(f"s_sub_u32 s{T}, s{s_dl}, s{s_sb}")
            a(f"s_mov_b32 s{s_sb}, s{s_dl}")
            a(f"v_add_u32 v{xa[0][0]}, s{T}, v{xa[0][0]}")
            a(f"v_add_u32 v{xa[1][0]}, s{T}, v{xa[1][0]}")
            a(f"v_add_u32 v{wa}, s{T}, v{wa}")
            a(f"v_add_u32 v{wd}, s{T}, v{wd}")
            a(M[1])
            Rd = reads(0, 0)
            for i, m in enumerate(M[2:]):
                for ins in Rd[2*i:2*i+2]: a(ins)
                a(m)
                if i < 3:
                    kk = i + 1
                    a(f"v_add_u32 v{xa[0][kk]}, s{T}, v{xa[0][kk]}")
                    a(f"v_add_u32 v{xa[1][kk]}, s{T}, v{xa[1][kk]}")
            a(f"s_add_u32 s{s_cnt}, s{s_cnt}, 1")
            a(f"s_cmp_lt_u32 s{s_cnt}, 8")
            a(f"s_cbranch_scc1 {lp}")
    a("s_waitcnt lgkmcnt(0)")
    stamp(a,3)
    a("s_nop 15")
    a.c("P1 epilogue: geglu + store h frags")
    srd(a, SRD_C, S_WS, 64 * 112 * 1024, off=WS_HF)
    c0 = R.alloc(2, 2); c1 = R.alloc(2, 2); one = R.alloc(2, 2)
    C0 = -2 * LOG2E * 0.7978845608028654
    for i in range(2):
        a(f"v_mov_b32 v{c0+i}, {f2u(C0):#x}")
        a(f"v_mov_b32 v{c1+i}, {f2u(C0*0.044715):#x}")
        a(f"v_mov_b32 v{one+i}, 1.0")
    vst = R.alloc()
    a(f"v_lshlrev_b32 v{vst}, 4, v0")
    s_b0, s_b1, s_f = S_U + 7, S_U + 8, S_U + 9
    for sx, sb in ((s_x0, s_b0), (s_x1, s_b1)):
        a(f"s_lshl_b32 s{T}, s{s_mb}, 2")
        a(f"s_add_u32 s{T}, s{T}, s{sx}")
        a(f"s_mul_i32 s{T}, s{T}, 112")
        a(f"s_mul_i32 s{T+1}, s{s_fb}, 7")
        a(f"s_add_u32 s{T}, s{T}, s{T+1}")
        a(f"s_lshl_b32 s{sb}, s{T}, 10")
    a(f"s_lshr_b32 s{s_f}, s{S_WAVE}, 1")
    a(f"s_lshl_b32 s{s_f}, s{s_f}, 12")
    tmp = [[R.alloc(2, 2) for _ in range(4)] for _ in range(2)]
    outp = [R.alloc(4, 4) for _ in range(2)]
    order = [(0,0,0),(1,0,1),(2,1,0),(3,1,1),(4,2,0),(5,2,1),(6,3,0)]
    for t, w, x in order:
        A = acc[t]; tp = tmp[t & 1]; o = outp[t & 1]
        pairs = [(A, A + 4), (A + 2, A + 6), (A + 8, A + 12), (A + 10, A + 14)]
        for i, (g, u) in enumerate(pairs):
            a(f"v_pk_mul_f32 {vr(tp[i],2)}, {vr(g,2)}, {vr(g,2)}")
        for i, (g, u) in enumerate(pairs):
            a(f"v_pk_fma_f32 {vr(tp[i],2)}, {vr(tp[i],2)}, {vr(c1,2)}, {vr(c0,2)}")
        for i, (g, u) in enumerate(pairs):
            a(f"v_pk_mul_f32 {vr(tp[i],2)}, {vr(tp[i],2)}, {vr(g,2)}")
        for i, (g, u) in enumerate(pairs):
            a(f"v_exp_f32 v{tp[i]}, v{tp[i]}")
            a(f"v_exp_f32 v{tp[i]+1}, v{tp[i]+1}")
        for i, (g, u) in enumerate(pairs):
            a(f"v_pk_mul_f32 {vr(u,2)}, {vr(u,2)}, {vr(g,2)}")
        for i, (g, u) in enumerate(pairs):
            a(f"v_pk_add_f32 {vr(tp[i],2)}, {vr(tp[i],2)}, {vr(one,2)}")
        for i, (g, u) in enumerate(pairs):
            a(f"v_rcp_f32 v{tp[i]}, v{tp[i]}")
            a(f"v_rcp_f32 v{tp[i]+1}, v{tp[i]+1}")
        a("s_nop 0")
        for i, (g, u) in enumerate(pairs):
            a(f"v_pk_mul_f32 {vr(u,2)}, {vr(u,2)}, {vr(tp[i],2)}")
        for i, (g, u) in enumerate(pairs):
            a(f"v_cvt_pk_bf16_f32 v{o+i}, v{u}, v{u+1}")
        if w < 3:
            a(f"s_add_u32 s{T}, s{s_b0 if x == 0 else s_b1}, s{s_f}")
            if w: a(f"s_add_u32 s{T}, s{T}, {1024*w}")
        else:
            a(f"s_add_u32 s{T}, s{s_b0}, {3*1024}")
        a(f"buffer_store_dwordx4 {vr(o,4)}, v{vst}, s[{SRD_C}:{SRD_C+3}], s{T} offen {st_flags}")
```

```python
from common import *
H_SZ = 4160
X_O = 4 * H_SZ
X_E = X_O + 4576
CH_SZ = X_E + 4576
P2_RED = 2 * CH_SZ
P2_LDS = P2_RED + 32768

def p2_load(a, R, base=0, s_ch_pair=None):
    T = S_T0
    s_d, s_lb = S_U, S_U + 1
    a.c("P2 load")
    a(f"s_lshr_b32 s{T}, s{S_WAVE}, 1")
    a(f"s_lshl_b32 s{s_d}, s{s_ch_pair}, 1")
    a(f"s_add_u32 s{s_d}, s{s_d}, s{T}")
    a(f"s_mul_i32 s{s_lb}, s{T}, {CH_SZ}")
    if base: a(f"s_add_u32 s{s_lb}, s{s_lb}, {base}")
    a(f"s_lshl_b32 s{T+1}, s{s_d}, 12")
    srd(a, SRD_A, S_SSMK, 4096, offreg=T + 1)
    srd(a, SRD_B, S_WS, 4096 + 16, off=WS_XR, offreg=T + 1)
    srd(a, SRD_C, S_SSMD, 1024)
    vl = R.alloc(); vh = R.alloc(); vD = R.alloc(); vz = R.alloc(4, 4); vt = R.alloc()
    a(f"v_lshlrev_b32 v{vl}, 4, v0")
    a(f"s_and_b32 s{T+2}, s{S_WAVE}, 1")
    for j in range(2):
        a(f"s_lshl_b32 s{T+3}, s{T+2}, 1")
        if j: a(f"s_add_u32 s{T+3}, s{T+3}, 1")
        a(f"s_mul_i32 s{T+4}, s{T+3}, {H_SZ}")
        a(f"s_add_u32 s{T+4}, s{T+4}, s{s_lb}")
        a(f"s_add_u32 m0, s{T+4}, 64")
        a(f"s_lshl_b32 s{T+3}, s{T+3}, 2")
        a(f"s_add_u32 s{T+3}, s{T+3}, 4")
        for n in range(4):
            a(f"buffer_load_dwordx4 v{vl}, s[{SRD_A}:{SRD_A+3}], s{T+3} offen offset:{1024*n} lds")
    a(f"s_mul_i32 s{T+4}, s{T+2}, {X_E - X_O}")
    a(f"s_add_u32 s{T+4}, s{T+4}, s{s_lb}")
    a(f"s_add_u32 m0, s{T+4}, {X_O}")
    a(f"s_lshl_b32 s{T+3}, s{T+2}, 1")
    for n in range(4):
        a(f"buffer_load_dwordx4 v{vl}, s[{SRD_B}:{SRD_B+3}], s{T+3} offen offset:{1024*n} lds")
    a(f"v_lshrrev_b32 v{vt}, 4, v0")
    a(f"v_and_b32 v{vh}, 15, v0")
    a(f"v_add_u32 v{vh}, v{vh}, v{vt}")
    a(f"v_subrev_u32 v{vh}, 15, v{vh}")
    a(f"v_lshlrev_b32 v{vh}, 2, v{vh}")
    vhd = R.alloc()
    a(f"buffer_load_dword v{vhd}, v{vh}, s[{SRD_A}:{SRD_A+3}], 0 offen")
    a(f"s_lshl_b32 s{T+3}, s{s_d}, 1")
    a(f"v_mov_b32 v{vD}, 0")
    a(f"buffer_load_ushort v{vD}, v{vD}, s[{SRD_C}:{SRD_C+3}], s{T+3} offen")
    for i in range(4): a(f"v_mov_b32 v{vz+i}, 0")
    a(f"v_cmp_gt_u32 vcc, 28, v0")
    a(f"v_mov_b32 v{vt}, {X_E + 4096 - 28*16}")
    a(f"v_mov_b32 v{vh}, {X_O + 4096}")
    a(f"v_cndmask_b32 v{vt}, v{vt}, v{vh}, vcc")
    a(f"v_add3_u32 v{vt}, v{vt}, v{vl}, s{s_lb}")
    a(f"v_cmp_gt_u32 vcc, 56, v0")
    a(f"s_and_saveexec_b64 s[{T+4}:{T+5}], vcc")
    a(f"ds_write_b128 v{vt}, {vr(vz,4)}")
    a(f"s_mov_b64 exec, s[{T+4}:{T+5}]")
    return dict(vhd=vhd, vD=vD, vz=vz, s_d=s_d, s_lb=s_lb)

def p2_compute(a, R, st, base=0, st_flags="", pre_barrier=None):
    T = S_T0
    s_d, s_lb = st["s_d"], st["s_lb"]
    vt, vt2, vha, vxa = R.alloc(), R.alloc(), R.alloc(), R.alloc()
    a.c("P2 compute")
    a("s_waitcnt vmcnt(0)")
    a(f"v_lshrrev_b32 v{vt}, 4, v0")
    a(f"v_mul_u32_u24 v{vt}, {H_SZ}, v{vt}")
    a(f"v_and_b32 v{vt2}, 15, v0")
    a(f"v_lshl_add_u32 v{vt}, v{vt2}, 2, v{vt}")
    a(f"v_add_u32 v{vt}, s{s_lb}, v{vt}")
    a(f"ds_write_b32 v{vt}, v{st['vhd']}")
    a(f"v_mov_b32 v{vt}, s{s_lb}")
    a(f"ds_write_b16 v{vt}, v{st['vz']} offset:{X_E + 4094}")
    a(f"s_and_b32 s{T}, s{S_WAVE}, 1")
    a(f"s_lshl_b32 s{T}, s{T}, 8")
    a(f"s_add_u32 s{T}, s{T}, s{s_lb}")
    a(f"v_and_b32 v{vt}, 3, v0")
    a(f"v_mul_u32_u24 v{vha}, {H_SZ}, v{vt}")
    a(f"v_bfe_u32 v{vt}, v0, 2, 2")
    a(f"v_lshrrev_b32 v{vt2}, 4, v0")
    a(f"v_add_u32 v{vt}, v{vt}, v{vt2}")
    a(f"v_lshl_add_u32 v{vha}, v{vt}, 4, v{vha}")
    a(f"v_add_u32 v{vha}, s{T}, v{vha}")
    a(f"v_and_b32 v{vt}, 1, v0")
    a(f"v_mul_u32_u24 v{vt}, {X_E - X_O}, v{vt}")
    a(f"v_sub_u32 v{vxa}, {X_E + 448}, v{vt}")
    a(f"v_bfe_u32 v{vt}, v0, 1, 3")
    a(f"v_lshlrev_b32 v{vt}, 6, v{vt}")
    a(f"v_sub_u32 v{vxa}, v{vxa}, v{vt}")
    a(f"v_lshl_add_u32 v{vxa}, v{vt2}, 4, v{vxa}")
    a(f"v_add_u32 v{vxa}, s{T}, v{vxa}")
    HD = R.alloc(4, 4)
    a(f"v_and_b32 v{vt}, 15, v0")
    a(f"v_lshl_add_u32 v{vt}, v{vt2}, 2, v{vt}")
    a(f"s_and_b32 s{T+1}, s{S_WAVE}, 1")
    a(f"s_cmp_eq_u32 s{T+1}, 0")
    a(f"s_cselect_b32 s{T+1}, 15, 99")
    for w in range(4):
        a(f"v_add_u32 v{vt2}, {w}, v{vt}")
        a(f"v_cmp_eq_u32 vcc, s{T+1}, v{vt2}")
        a("s_nop 1")
        a(f"v_cndmask_b32 v{HD+w}, 0, v{st['vD']}, vcc")
    acc = [R.alloc(4, 4) for _ in range(8)]
    for t in range(8):
        for i in range(4): a(f"v_mov_b32 v{acc[t]+i}, 0")
    HF = [[R.alloc(4, 4) for _ in range(8)] for _ in range(2)]
    XF = [[R.alloc(4, 4) for _ in range(8)] for _ in range(2)]
    def reads(fs, bb):
        L = []
        for i in range(8):
            L.append(f"ds_read_b128 {vr(XF[fs][7-i],4)}, v{vxa} offset:{64*bb + 512*(7-i)}")
            L.append(f"ds_read_b128 {vr(HF[fs][i],4)}, v{vha} offset:{64*bb + 512*i}")
        return L
    def mf(fs):
        L = []
        for aa in range(8):
            for t in range(aa, 8):
                L.append(f"v_mfma_f32_16x16x32_bf16 {vr(acc[t],4)}, {vr(XF[fs][7-(t-aa)],4)}, {vr(HF[fs][aa],4)}, {vr(acc[t],4)}")
        return L
    a("s_waitcnt lgkmcnt(0)")
    if pre_barrier: pre_barrier()
    a("s_barrier")
    stamp(a, 2)
    for ins in reads(0, 0): a(ins)
    for bb in range(4):
        fs = bb & 1
        a("s_waitcnt lgkmcnt(0)")
        M = mf(fs)
        if bb == 0:
            M = [f"v_mfma_f32_16x16x32_bf16 {vr(acc[t],4)}, {vr(XF[0][7-t],4)}, {vr(HD,4)}, {vr(acc[t],4)}" for t in range(8)] + M
        Rd = reads(fs ^ 1, bb + 1) if bb < 3 else []
        for i, m in enumerate(M):
            a(m)
            if i % 2 == 1 and Rd:
                a(Rd.pop(0))
        assert not Rd
    stamp(a, 3)
    a("s_nop 7")
    a(f"s_lshl_b32 s{T}, s{S_WAVE}, 13")
    a(f"s_add_u32 s{T}, s{T}, {base + P2_RED}")
    a(f"v_lshrrev_b32 v{vt}, 4, v0")
    a(f"v_lshlrev_b32 v{vt}, 8, v{vt}")
    a(f"v_and_b32 v{vt2}, 15, v0")
    a(f"v_lshl_add_u32 v{vt}, v{vt2}, 3, v{vt}")
    a(f"v_add_u32 v{vt}, s{T}, v{vt}")
    for t in range(8):
        a(f"ds_write_b64 v{vt}, {vr(acc[t],2)} offset:{1024*t}")
        a(f"ds_write_b64 v{vt}, {vr(acc[t]+2,2)} offset:{1024*t+128}")
    a("s_waitcnt lgkmcnt(0)")
    a("s_barrier")
    srd(a, SRD_A, S_WS, 512 * 4096, off=WS_YT)
    a(f"s_lshr_b32 s{T}, s{S_WAVE}, 1")
    a(f"s_lshl_b32 s{T}, s{T}, 14")
    a(f"s_and_b32 s{T+1}, s{S_WAVE}, 1")
    a(f"s_lshl_b32 s{T+2}, s{T+1}, 11")
    a(f"s_add_u32 s{T}, s{T}, s{T+2}")
    a(f"s_add_u32 s{T}, s{T}, {base + P2_RED}")
    a(f"v_lshlrev_b32 v{vt}, 5, v0")
    a(f"v_add_u32 v{vt}, s{T}, v{vt}")
    F = [[R.alloc(4, 4) for _ in range(4)] for _ in range(2)]
    for e in range(2):
        a(f"ds_read_b128 {vr(F[e][0],4)}, v{vt} offset:{4096*e}")
        a(f"ds_read_b128 {vr(F[e][1],4)}, v{vt} offset:{4096*e+16}")
        a(f"ds_read_b128 {vr(F[e][2],4)}, v{vt} offset:{4096*e+8192}")
        a(f"ds_read_b128 {vr(F[e][3],4)}, v{vt} offset:{4096*e+8192+16}")
    a(f"s_lshl_b32 s{T}, s{s_d}, 12")
    a(f"s_lshl_b32 s{T+1}, s{T+1}, 10")
    a(f"s_add_u32 s{T}, s{T}, s{T+1}")
    a(f"v_lshlrev_b32 v{vt2}, 4, v0")
    o = [R.alloc(4, 4) for _ in range(2)]
    for e in range(2):
        a(f"s_waitcnt lgkmcnt({4*(1-e)})")
        for i in range(4):
            a(f"v_add_f32 v{F[e][0]+i}, v{F[e][0]+i}, v{F[e][2]+i}")
            a(f"v_add_f32 v{F[e][1]+i}, v{F[e][1]+i}, v{F[e][3]+i}")
        a(f"v_cvt_pk_bf16_f32 v{o[e]}, v{F[e][0]}, v{F[e][0]+1}")
        a(f"v_cvt_pk_bf16_f32 v{o[e]+1}, v{F[e][0]+2}, v{F[e][0]+3}")
        a(f"v_cvt_pk_bf16_f32 v{o[e]+2}, v{F[e][1]}, v{F[e][1]+1}")
        a(f"v_cvt_pk_bf16_f32 v{o[e]+3}, v{F[e][1]+2}, v{F[e][1]+3}")
        a(f"buffer_store_dwordx4 {vr(o[e],4)}, v{vt2}, s[{SRD_A}:{SRD_A+3}], s{T} offen offset:{2048*e} {st_flags}")
```

```python
from common import *
P3_RING = 8
P3_WSZ = P3_RING * 2048
P3_RED = 4 * P3_WSZ
P3_Y = P3_RED + 49152
P3_LDS = P3_Y + 8192

def p3_map(a, s_sb, s_nb):
    T = S_T0
    a(f"s_and_b32 s{T}, s2, 7")
    a(f"s_lshr_b32 s{T+1}, s2, 3")
    a(f"s_lshl_b32 s{s_sb}, s{T}, 2")
    a(f"s_and_b32 s{T+2}, s{T+1}, 3")
    a(f"s_add_u32 s{s_sb}, s{s_sb}, s{T+2}")
    a(f"s_lshr_b32 s{s_nb}, s{T+1}, 2")

def p3_main(a, R, base=0, DEPTH=8):
    T = S_T0
    s_sb, s_nb, s_h0, s_w, s_lds, s_cnt = [S_U + 2 + i for i in range(6)]
    p3_map(a, s_sb, s_nb)
    srd(a, SRD_A, S_WS, 64 * 112 * 1024, off=WS_HF)
    srd(a, SRD_B, S_WD, 1792 * 1024)
    acc = [[R.alloc(16, 4) for _ in range(2)] for _ in range(2)]
    HB = [[R.alloc(4, 4) for _ in range(2)] for _ in range(P3_RING)]
    WF = [[R.alloc(4, 4) for _ in range(2)] for _ in range(2)]
    vl, vw0, vw1, va0, va1, t0, t1 = [R.alloc() for _ in range(7)]
    a(f"v_lshlrev_b32 v{vl}, 4, v0")
    a(f"s_mul_i32 s{s_h0}, s{s_sb}, 224")
    a(f"s_mul_i32 s{T}, s{S_WAVE}, 28")
    a(f"s_add_u32 s{s_h0}, s{s_h0}, s{T}")
    a(f"s_lshl_b32 s{s_h0}, s{s_h0}, 10")
    a(f"v_lshrrev_b32 v{t0}, 3, v0")
    a(f"v_bfe_u32 v{t1}, v0, 4, 1")
    a(f"v_lshlrev_b32 v{t1}, 2, v{t1}")
    a(f"v_and_b32 v{vw0}, 7, v0")
    a(f"v_xor_b32 v{vw0}, v{vw0}, v{t1}")
    a(f"v_lshlrev_b32 v{vw0}, 4, v{vw0}")
    a(f"v_lshl_add_u32 v{vw0}, v{t0}, 10, v{vw0}")
    a(f"s_lshl_b32 s{T}, s{s_nb}, 7")
    a(f"v_add_u32 v{vw0}, s{T}, v{vw0}")
    a(f"v_add_u32 v{vw1}, {8192 - 1024}, v{vw0}")
    a(f"s_mul_i32 s{s_w}, s{S_WAVE}, {28*16*1024}")
    a(f"s_mul_i32 s{s_lds}, s{S_WAVE}, {P3_WSZ}")
    if base: a(f"s_add_u32 s{s_lds}, s{s_lds}, {base}")
    a(f"v_lshrrev_b32 v{t0}, 5, v0")
    a(f"v_lshlrev_b32 v{t0}, 2, v{t0}")
    a(f"v_bfe_u32 v{t1}, v0, 2, 2")
    a(f"v_add_u32 v{t0}, v{t0}, v{t1}")
    a(f"v_lshlrev_b32 v{va0}, 7, v{t0}")
    a(f"v_bfe_u32 v{t0}, v0, 4, 1")
    a(f"v_lshlrev_b32 v{t0}, 1, v{t0}")
    a(f"v_bfe_u32 v{t1}, v0, 1, 1")
    a(f"v_add_u32 v{t0}, v{t0}, v{t1}")
    a(f"v_bfe_u32 v{t1}, v0, 3, 1")
    a(f"v_lshlrev_b32 v{t1}, 2, v{t1}")
    a(f"v_xor_b32 v{t0}, v{t0}, v{t1}")
    a(f"v_lshl_add_u32 v{va0}, v{t0}, 4, v{va0}")
    a(f"v_and_b32 v{t0}, 1, v0")
    a(f"v_lshl_add_u32 v{va0}, v{t0}, 3, v{va0}")
    a(f"v_add_u32 v{va0}, s{s_lds}, v{va0}")
    a(f"v_xor_b32 v{va1}, 64, v{va0}")
    for nt in range(2):
        for mt in range(2):
            for i in range(16): a(f"v_mov_b32 v{acc[nt][mt]+i}, 0")
    def issue(slot):
        a(f"s_add_u32 m0, s{s_lds}, {slot*2048}")
        a(f"s_add_u32 s{T}, s{s_h0}, {112*1024}")
        a(f"buffer_load_dwordx4 v{vw0}, s[{SRD_B}:{SRD_B+3}], s{s_w} offen lds")
        a(f"buffer_load_dwordx4 v{vw1}, s[{SRD_B}:{SRD_B+3}], s{s_w} offen offset:1024 lds")
        a(f"buffer_load_dwordx4 {vr(HB[slot][0],4)}, v{vl}, s[{SRD_A}:{SRD_A+3}], s{s_h0} offen")
        a(f"buffer_load_dwordx4 {vr(HB[slot][1],4)}, v{vl}, s[{SRD_A}:{SRD_A+3}], s{T} offen")
        a(f"s_add_u32 s{s_h0}, s{s_h0}, 1024")
        a(f"s_add_u32 s{s_w}, s{s_w}, {16*1024}")
    def wreads(fs, slot):
        for nt in range(2):
            for rho in range(2):
                a(f"ds_read_b64_tr_b16 {vr(WF[fs][nt]+2*rho,2)}, v{va0 if nt == 0 else va1} offset:{slot*2048 + rho*1024}")
    NS = 28
    R_ = P3_RING
    for s in range(min(DEPTH, NS)): issue(s % R_)
    issued = min(DEPTH, NS)
    a(f"s_waitcnt vmcnt({4*(issued-1)})")
    wreads(0, 0)
    for s in range(NS):
        fs = s & 1
        if s + 1 < NS:
            a(f"s_waitcnt vmcnt({4*(issued-s-2)})")
            wreads(fs ^ 1, (s + 1) % R_)
            a("s_waitcnt lgkmcnt(4)")
        else:
            a("s_waitcnt lgkmcnt(0)")
        for nt in range(2):
            for mt in range(2):
                a(f"v_mfma_f32_32x32x16_bf16 {vr(acc[nt][mt],16)}, {vr(WF[fs][nt],4)}, {vr(HB[s%R_][mt],4)}, {vr(acc[nt][mt],16)}")
        if issued < NS:
            issue(issued % R_)
            issued += 1
    return dict(acc=acc, s_sb=s_sb, s_nb=s_nb)

def p3_epi_loads(a, R, st, base=0):
    T = S_T0
    s_sb, s_nb = st["s_sb"], st["s_nb"]
    srd(a, SRD_C, S_WS, 512 * 4096, off=WS_YT)
    srd(a, SRD_D, S_Q, 2048 * 1024)
    srd(a, SRD_E, S_WS, 8192, off=WS_GATE)
    vy, t0, t1 = R.alloc(), R.alloc(), R.alloc()
    a(f"v_lshrrev_b32 v{t0}, 3, v0")
    a(f"v_bfe_u32 v{t1}, v0, 4, 1")
    a(f"v_lshlrev_b32 v{t1}, 2, v{t1}")
    a(f"v_and_b32 v{vy}, 7, v0")
    a(f"v_xor_b32 v{vy}, v{vy}, v{t1}")
    a(f"v_lshlrev_b32 v{vy}, 4, v{vy}")
    a(f"v_lshl_add_u32 v{vy}, v{t0}, 12, v{vy}")
    a(f"s_lshl_b32 s{T}, s{s_nb}, 2")
    a(f"s_add_u32 s{T}, s{T}, s{S_WAVE}")
    a(f"s_lshl_b32 s{T}, s{T}, 16")
    a(f"s_lshl_b32 s{T+1}, s{s_sb}, 7")
    a(f"s_add_u32 s{T}, s{T}, s{T+1}")
    a(f"s_lshl_b32 s{T+1}, s{S_WAVE}, 11")
    a(f"s_add_u32 m0, s{T+1}, {base + P3_Y}")
    a(f"v_add_u32 v{t0}, {8*4096 - 1024}, v{vy}")
    a(f"buffer_load_dwordx4 v{vy}, s[{SRD_C}:{SRD_C+3}], s{T} offen lds")
    a(f"buffer_load_dwordx4 v{t0}, s[{SRD_C}:{SRD_C+3}], s{T} offen offset:1024 lds")
    q = [R.alloc(2, 2) for _ in range(4)]
    vq, g = R.alloc(), R.alloc()
    a(f"s_and_b32 s{T}, s{S_WAVE}, 1")
    a(f"s_lshl_b32 s{T}, s{T}, 5")
    a(f"s_lshl_b32 s{T+1}, s{s_sb}, 6")
    a(f"s_add_u32 s{T}, s{T}, s{T+1}")
    a(f"v_and_b32 v{t0}, 31, v0")
    a(f"v_add_u32 v{t0}, s{T}, v{t0}")
    a(f"v_lshlrev_b32 v{g}, 2, v{t0}")
    a(f"v_lshlrev_b32 v{vq}, 10, v{t0}")
    a(f"v_lshrrev_b32 v{t1}, 5, v0")
    a(f"v_lshl_add_u32 v{vq}, v{t1}, 3, v{vq}")
    a(f"s_lshr_b32 s{T}, s{S_WAVE}, 1")
    a(f"s_lshl_b32 s{T}, s{T}, 6")
    a(f"s_lshl_b32 s{T+1}, s{s_nb}, 7")
    a(f"s_add_u32 s{T}, s{T}, s{T+1}")
    a(f"v_add_u32 v{vq}, s{T}, v{vq}")
    for i in range(4):
        a(f"buffer_load_dwordx2 {vr(q[i],2)}, v{vq}, s[{SRD_D}:{SRD_D+3}], 0 offen offset:{16*i}")
    a(f"buffer_load_dword v{g}, v{g}, s[{SRD_E}:{SRD_E+3}], 0 offen")
    st.update(q=q, vq=vq, g=g)

def p3_epilogue(a, R, st, base=0):
    T = S_T0
    acc, q, vq, g = st["acc"], st["q"], st["vq"], st["g"]
    vt, vt2 = R.alloc(), R.alloc()
    a.c("P3 reduce")
    a("s_nop 15")
    a(f"v_lshlrev_b32 v{vt}, 4, v0")
    a(f"v_add_u32 v{vt}, {base + P3_RED}, v{vt}")
    tiles = [acc[0][0], acc[0][1], acc[1][0], acc[1][1]]
    for d in range(4):
        lab = a.label("P3skip")
        a(f"s_cmp_eq_u32 s{S_WAVE}, {d}")
        a(f"s_cbranch_scc1 {lab}")
        a(f"s_sub_u32 s{T}, s{S_WAVE}, {d+1}")
        a(f"s_and_b32 s{T}, s{T}, 3")
        a(f"s_lshl_b32 s{T}, s{T}, 12")
        a(f"s_add_u32 s{T}, s{T}, {d*12288}")
        a(f"v_add_u32 v{vt2}, s{T}, v{vt}")
        for i in range(4):
            a(f"ds_write_b128 v{vt2}, {vr(tiles[d]+4*i,4)} offset:{1024*i}")
        a(f"{lab}:")
    for d in range(1, 4):
        lab = a.label("P3own")
        a(f"s_cmp_lg_u32 s{S_WAVE}, {d}")
        a(f"s_cbranch_scc1 {lab}")
        for i in range(16): a(f"v_mov_b32 v{tiles[0]+i}, v{tiles[d]+i}")
        a(f"{lab}:")
    a("s_waitcnt vmcnt(0) lgkmcnt(0)")
    a("s_barrier")
    own = tiles[0]
    P = [tiles[1], tiles[2], tiles[3]]
    a(f"s_mul_i32 s{T}, s{S_WAVE}, 12288")
    a(f"v_add_u32 v{vt2}, s{T}, v{vt}")
    for j in range(3):
        for i in range(4):
            a(f"ds_read_b128 {vr(P[j]+4*i,4)}, v{vt2} offset:{4096*j + 1024*i}")
    Y = [R.alloc(2, 2) for _ in range(4)]
    t0, t1 = R.alloc(), R.alloc()
    a(f"v_lshrrev_b32 v{t0}, 5, v0")
    a(f"v_lshlrev_b32 v{t0}, 2, v{t0}")
    a(f"v_bfe_u32 v{t1}, v0, 2, 2")
    a(f"v_add_u32 v{t0}, v{t0}, v{t1}")
    a(f"v_lshlrev_b32 v{vt2}, 7, v{t0}")
    a(f"v_bfe_u32 v{t0}, v0, 4, 1")
    a(f"v_lshlrev_b32 v{t0}, 1, v{t0}")
    a(f"v_bfe_u32 v{t1}, v0, 1, 1")
    a(f"v_add_u32 v{t0}, v{t0}, v{t1}")
    a(f"v_bfe_u32 v{t1}, v0, 3, 1")
    a(f"s_and_b32 s{T}, s{S_WAVE}, 1")
    a(f"v_xor_b32 v{t1}, s{T}, v{t1}")
    a(f"v_lshlrev_b32 v{t1}, 2, v{t1}")
    a(f"v_xor_b32 v{t0}, v{t0}, v{t1}")
    a(f"v_lshl_add_u32 v{vt2}, v{t0}, 4, v{vt2}")
    a(f"v_and_b32 v{t0}, 1, v0")
    a(f"v_lshl_add_u32 v{vt2}, v{t0}, 3, v{vt2}")
    a(f"s_lshr_b32 s{T}, s{S_WAVE}, 1")
    a(f"s_lshl_b32 s{T}, s{T}, 12")
    a(f"s_add_u32 s{T}, s{T}, {base + P3_Y}")
    a(f"v_add_u32 v{vt2}, s{T}, v{vt2}")
    for i in range(4):
        a(f"ds_read_b64_tr_b16 {vr(Y[i],2)}, v{vt2} offset:{1024*i}")
    a("s_waitcnt lgkmcnt(0)")
    for j in range(3):
        for i in range(16):
            a(f"v_add_f32 v{own+i}, v{own+i}, v{P[j]+i}")
    omg = R.alloc()
    a(f"v_sub_f32 v{omg}, 1.0, v{g}")
    a(f"v_cvt_pk_bf16_f32 v{omg}, v{omg}, v{omg}")
    a(f"v_lshlrev_b32 v{omg}, 16, v{omg}")
    qf, yf = R.alloc(), R.alloc()
    o = R.alloc(8, 4)
    for i in range(4):
        for j in range(4):
            src_q = q[i] + (j >> 1); src_y = Y[i] + (j >> 1)
            if j & 1:
                a(f"v_and_b32 v{qf}, 0xffff0000, v{src_q}")
                a(f"v_and_b32 v{yf}, 0xffff0000, v{src_y}")
            else:
                a(f"v_lshlrev_b32 v{qf}, 16, v{src_q}")
                a(f"v_lshlrev_b32 v{yf}, 16, v{src_y}")
            a(f"v_mul_f32 v{qf}, v{qf}, v{yf}")
            a(f"v_mul_f32 v{qf}, v{qf}, v{g}")
            a(f"v_fma_f32 v{own+4*i+j}, v{own+4*i+j}, v{omg}, v{qf}")
        a(f"v_cvt_pk_bf16_f32 v{o+2*i}, v{own+4*i}, v{own+4*i+1}")
        a(f"v_cvt_pk_bf16_f32 v{o+2*i+1}, v{own+4*i+2}, v{own+4*i+3}")
    srd(a, SRD_A, S_OUT, 2048 * 1024)
    for i in range(4):
        a(f"buffer_store_dwordx2 {vr(o+2*i,2)}, v{vq}, s[{SRD_A}:{SRD_A+3}], 0 offen offset:{16*i}")
```

```python
import common
from common import *
import sys
common.STAMPS = len(sys.argv) > 1
import p0, p1, p2, p3
def fin(a, lab, kidx):
    a(f"{lab}:")
    a("s_waitcnt vmcnt(0)")
    stamp(a, 5)
    stamp_flush(a, kidx)
def k1(a, name):
    a.L.append(khead(name)); a.L.append("")
    prologue(a); stamp_rt(a, 6); stamp(a, 0)
    a(f"s_cmp_ge_u32 s{S_WAVE}, 4")
    a("s_cbranch_scc1 L_k1_loader")
    R = Regs(2, 256)
    r = p0.p0_issue(a, R)
    p0.p0_compute(a, R, r, p1.P1_LDS)
    stamp(a, 1)
    R = Regs(2, 256)
    p1.p1_compute(a, R)
    stamp(a, 4)
    a("s_branch L_fin1")
    a("L_k1_loader:")
    R = Regs(2, 256)
    st = p1.p1_loader_setup(a, R)
    p1.p1_loader_run(a, st)
    fin(a, "L_fin1", 0)
    a("L_end:"); a("s_endpgm")
    a.L.append(kdesc(name))
def k2(a, name):
    a.L.append(khead(name))
    t = Asm(); prologue(t); a.L += [l.replace("L_end", "L_end2") for l in t.L]
    stamp_rt(a, 6); stamp(a, 0)
    R = Regs(2, 256)
    st = p2.p2_load(a, R, s_ch_pair=2)
    stamp(a, 1)
    p2.p2_compute(a, R, st)
    stamp(a, 4)
    fin(a, "L_fin2", 1)
    a("L_end2:"); a("s_endpgm")
    a.L.append(kdesc(name))
def k3(a, name):
    a.L.append(khead(name))
    t = Asm(); prologue(t); a.L += [l.replace("L_end", "L_end3") for l in t.L]
    stamp_rt(a, 6); stamp(a, 0)
    R = Regs(2, 256)
    st = p3.p3_main(a, R)
    stamp(a, 2)
    p3.p3_epi_loads(a, R, st)
    p3.p3_epilogue(a, R, st)
    stamp(a, 4)
    fin(a, "L_fin3", 2)
    a("L_end3:"); a("s_endpgm")
    a.L.append(kdesc(name))
a = Asm()
hdr = open("cdna_kernels/" + NAME + ".s.ref").read().split("\n")
hdr = [l for l in hdr if l.startswith(";") and "@launch" not in l and "Override" not in l and "grid=ceil" not in l][:16]
a.L += hdr
a.L.append(f"; @launch kernel=k1_kernel grid=(256,1,1) block=(512,1,1) lds={p1.P1_LDS + 8192}")
a.L.append(f"; @launch kernel=k2_kernel grid=(256,1,1) block=(256,1,1) lds={p2.P2_LDS}")
a.L.append(f"; @launch kernel=k3_kernel grid=(256,1,1) block=(256,1,1) lds={p3.P3_LDS}")
a.L.append('.amdgcn_target "amdgcn-amd-amdhsa--gfx950"')
k1(a, "k1_kernel"); k2(a, "k2_kernel"); k3(a, "k3_kernel")
out = "k3.s" if len(sys.argv) > 1 else "k3n.s"
open(out, "w").write(a.text())
```
